```python
import torch

def _softmax(x, axis=-1):
    return torch.softmax(x, dim=axis)
def _gelu(x):
    return torch.nn.functional.gelu(x, approximate="tanh")
def _silu(x):
    return torch.nn.functional.silu(x)
def _sigmoid(x):
    return torch.sigmoid(x)
def _layernorm(x, axis=-1, eps=1e-5):
    m = x.mean(dim=axis, keepdim=True)
    v = x.var(dim=axis, keepdim=True, unbiased=False)
    return (x - m) / torch.sqrt(v + eps)
def _scatter_add(tgt, idx, src, axis=0):
    return tgt.clone().index_add_(axis, idx, src)
def _segment_sum(src, seg, n):
    out = torch.zeros((n,) + src.shape[1:], dtype=src.dtype)
    return out.index_add_(0, seg, src)
def _pad(x, pw):
    flat = tuple(v for pair in reversed(pw) for v in pair)
    return torch.nn.functional.pad(x, flat)

kernel_name = 'standalone__paged_block_table_kv_pagedattention__prompt'

def setup_inputs():

    _w = (lambda a: (lambda t: t.to(torch.bfloat16) if t.is_floating_point() else t)(torch.as_tensor(a)))
    B, Hq, Hkv, Sq, Skv, D = 1, 16, 8, 2048, 2048, 256
    bs = 16
    nbps = max(1, Skv // bs)
    num_phys = B * nbps + 4
    bt = torch.randperm(num_phys)[: B * nbps].reshape(B, nbps).to(torch.int64)
    cl = (nbps * bs - (torch.arange(1, B + 1, dtype=torch.int64) * 2654435761) % max(1, nbps * bs // 2)).to(torch.int64)
    return {
        "q": _w((lambda *s: torch.randn(*s, dtype=torch.bfloat16) * 0.8)(B, Hq, Sq, D)),
        "k_cache": _w((lambda *s: torch.randn(*s, dtype=torch.bfloat16) * 0.8)(num_phys, bs, Hkv, D)),
        "v_cache": _w((lambda *s: torch.randn(*s, dtype=torch.bfloat16) * 0.05)(num_phys, bs, Hkv, D)),
        "block_table": _w(bt),
        "context_lens": _w(cl),
    }

def reference(q, k_cache, v_cache, block_table, context_lens):
    B, Hq, Sq, D = q.shape
    bs = k_cache.shape[1]
    Hkv = k_cache.shape[2]
    nbps = block_table.shape[1]
    Skv = nbps * bs
    bt = block_table.reshape(-1)
    k = (lambda x, *d: x.permute(*d))(k_cache[bt].reshape(B, Skv, Hkv, D), 0, 2, 1, 3)
    v = (lambda x, *d: x.permute(*d))(v_cache[bt].reshape(B, Skv, Hkv, D), 0, 2, 1, 3)
    g = Hq // Hkv
    qg = q.reshape(B, Hkv, g, Sq, D)
    scores = torch.einsum("bhgqd,bhkd->bhgqk", qg, k) * (D ** -0.5)
    pos = torch.arange(Skv)
    msk = pos[None, :] < context_lens[:, None]
    scores = torch.where(msk[:, None, None, None, :], scores, -1e9)
    p = _softmax(scores, axis=-1)
    out = torch.einsum("bhgqk,bhkd->bhgqd", p, v)
    return out.reshape(B, Hq, Sq, D)
```

```python
import re

class Ins:
    __slots__ = ("text", "kind", "rd", "wr", "srcc", "cost", "label", "meta")
    def __init__(self, text, kind, rd=(), wr=(), srcc=(), cost=1, label=None, meta=None):
        self.text = text; self.kind = kind
        self.rd = set(rd); self.wr = set(wr); self.srcc = set(srcc)
        self.cost = cost; self.label = label; self.meta = meta

def regs(spec):
    spec = spec.strip().lstrip('-')
    m = re.fullmatch(r'([vsa])\[(\d+):(\d+)\]', spec)
    if m:
        return {f"{m.group(1)}{i}" for i in range(int(m.group(2)), int(m.group(3)) + 1)}
    m = re.fullmatch(r'([vsa])(\d+)', spec)
    if m:
        return {spec}
    if spec in ('vcc', 'm0', 'exec', 'scc'):
        return {spec}
    return set()

def R(p, lo, n=1):
    return f"{p}{lo}" if n == 1 else f"{p}[{lo}:{lo+n-1}]"

def union(specs):
    s = set()
    for x in specs:
        s |= regs(x)
    return s

TRANS = ('v_exp_f32', 'v_rcp_f32', 'v_log_f32', 'v_rsq_f32', 'v_sqrt_f32')

def valu(op, dst, *srcs, extra_rd=(), extra_wr=(), mods=""):
    kind = 'trans' if op in TRANS else 'valu'
    text = f"{op} {dst}, " + ", ".join(str(s) for s in srcs) + (" " + mods if mods else "")
    rd = union([str(s) for s in srcs]) | union(extra_rd)
    wr = regs(dst) | union(extra_wr)
    if op.startswith('v_fmac') or op.startswith('v_dot2c'):
        rd |= regs(dst)
    if op.startswith('v_permlane'):
        kind = 'permlane'
        rd |= regs(dst); wr |= union([str(s) for s in srcs])
    if op in ('v_readlane_b32', 'v_readfirstlane_b32'):
        kind = 'readlane'
    return Ins(text, kind, rd, wr, cost=2 if kind == 'trans' else 1)

def salu(op, dst, *srcs, scc=True):
    text = f"{op} {dst}" + ("".join(", " + str(s) for s in srcs))
    rd = union([str(s) for s in srcs])
    wr = regs(dst)
    if op.startswith('s_cmp'):
        rd |= regs(dst); wr = {'scc'}
    elif op.startswith('s_cselect'):
        rd |= {'scc'}
    elif op not in ('s_mov_b32', 's_mov_b64', 's_movk_i32', 's_mul_i32', 's_getreg_b32'):
        wr |= {'scc'}
    return Ins(text, 'salu', rd, wr)

def mfma(dst, a, b, c, shape="32x32x16"):
    text = f"v_mfma_f32_{shape}_bf16 {dst}, {a}, {b}, {c}"
    return Ins(text, 'mfma', regs(a) | regs(b) | regs(c), regs(dst), srcc=regs(c), cost=2,
               meta=(dst, a, b, c, 8 if shape == "32x32x16" else 4))

def ds_read(op, dst, addr, offset=0):
    text = f"{op} {dst}, {addr}" + (f" offset:{offset}" if offset else "")
    assert 0 <= offset < 65536
    return Ins(text, 'ds', regs(addr), regs(dst))

def ds_write(op, addr, src, offset=0):
    text = f"{op} {addr}, {src}" + (f" offset:{offset}" if offset else "")
    assert 0 <= offset < 65536
    return Ins(text, 'dsw', regs(addr) | regs(src), ())

def buf_load(op, dst, voff, srd, soff, offset=0, flags=""):
    assert 0 <= offset < 4096
    text = f"{op} {dst}, {voff}, {srd}, {soff} offen" + (f" offset:{offset}" if offset else "") + (" " + flags if flags else "")
    return Ins(text, 'vmem', regs(voff) | regs(srd) | regs(str(soff)), regs(dst))

def buf_load_lds(voff, srd, soff, offset=0, flags="", op="buffer_load_dwordx4"):
    assert 0 <= offset < 4096
    text = f"{op} {voff}, {srd}, {soff} offen" + (f" offset:{offset}" if offset else "") + (" " + flags if flags else "") + " lds"
    return Ins(text, 'dma', regs(voff) | regs(srd) | regs(str(soff)) | {'m0'}, ())

def buf_store(op, src, voff, srd, soff, offset=0, flags=""):
    assert 0 <= offset < 4096
    text = f"{op} {src}, {voff}, {srd}, {soff} offen" + (f" offset:{offset}" if offset else "") + (" " + flags if flags else "")
    return Ins(text, 'vstore', regs(voff) | regs(srd) | regs(str(soff)) | regs(src), (), meta=regs(src))

def raw(text, kind='misc', rd=(), wr=()):
    return Ins(text, kind, union(rd), union(wr))

def nop(n):
    assert 1 <= n <= 16
    i = Ins(f"s_nop {n-1}", 'nop'); i.cost = n
    return i

def label(name):
    return Ins(f"{name}:", 'label', label=name, cost=0)

def waitcnt(vm=None, lgkm=None):
    t = "s_waitcnt"
    if vm is not None:
        assert 0 <= vm <= 63
        t += f" vmcnt({vm})"
    if lgkm is not None:
        assert 0 <= lgkm <= 15
        t += f" lgkmcnt({lgkm})"
    return Ins(t, 'wait')

VALU_KINDS = ('valu', 'trans', 'permlane', 'readlane')

def states(ins):
    if ins.kind == 'label': return 0
    if ins.kind == 'nop': return ins.cost
    return 1

def check_hazards(seq, name=""):
    errs = []
    n = len(seq)
    for i, p in enumerate(seq):
        if p.kind in ('label', 'nop', 'wait', 'misc') and not p.wr:
            continue
        dist = 0
        for j in range(i + 1, min(n, i + 40)):
            c = seq[j]
            need = 0
            if p.kind == 'mfma':
                passes = p.meta[4]
                big = {8: 12, 4: 8}[passes]
                ovl = {8: 10, 4: 6}[passes]
                war = {8: 7, 4: 3}[passes]
                if c.kind == 'mfma':
                    ab = regs(c.meta[1]) | regs(c.meta[2])
                    if ab & p.wr: need = max(need, big)
                    if c.srcc & p.wr:
                        if c.meta[3] == p.meta[0] and c.meta[4] == passes: pass
                        else: need = max(need, ovl)
                    elif c.wr & p.wr and not (c.meta[0] == p.meta[0]):
                        need = max(need, big)
                elif c.kind in VALU_KINDS or c.kind in ('ds', 'dsw', 'vmem', 'dma', 'vstore'):
                    if (c.rd | c.wr) & p.wr: need = max(need, big)
                    if c.kind in VALU_KINDS and (c.wr & p.srcc): need = max(need, war)
            if p.kind in VALU_KINDS:
                vw = {r for r in p.wr if r[0] in 'va' and r != 'vcc'}
                sw = {r for r in p.wr if r[0] == 's' or r == 'vcc'}
                if c.kind == 'mfma' and (c.rd & vw): need = max(need, 2)
                if c.kind == 'permlane' and (c.rd & vw): need = max(need, 2)
                if c.kind == 'readlane' and (c.rd & vw): need = max(need, 1)
                if p.kind == 'trans' and c.kind in ('valu', 'permlane', 'readlane') and (c.rd & vw): need = max(need, 1)
                if p.kind == 'trans' and c.kind in ('ds', 'dsw', 'vmem', 'vstore', 'dma') and (c.rd & vw): need = max(need, 1)
                if c.kind in ('vmem', 'dma', 'vstore') and (c.rd & sw): need = max(need, 5)
                if c.kind in VALU_KINDS and (c.rd & sw):
                    need = max(need, 4 if c.kind == 'readlane' else 2)
            if p.kind == 'salu' and 'm0' in p.wr and c.kind == 'dma': need = max(need, 1)
            if p.kind == 'vstore' and len(p.meta) >= 3 and (c.wr & p.meta):
                need = max(need, 2)
            if need > dist:
                errs.append(f"{name}: hazard need {need} have {dist}: [{i}] {p.text}  ->  [{j}] {c.text}")
            dist += states(c)
            if dist >= 20: break
    return errs

def render(seq):
    out = []
    for x in seq:
        if x.kind == 'label': out.append(x.text)
        else: out.append("    " + x.text)
    return "\n".join(out) + "\n"
```

```python
import sys, struct, argparse
from asmlib import *

KNAME = "standalone__paged_block_table_kv_pagedattention__prompt_kernel"

def f2u(x): return struct.unpack('<I', struct.pack('<f', x))[0]

class Cfg:
    DIST = 6
    BAR_GAP = 3
    DMA_START = 5
    DMA_STEP = 3
    VALU_START = 2
    VALU_END = 29
    STORE_FLAGS = ""
    STAMP = False
    WAIT_EVERY = 2

O0 = 0
S = [128, 144]
P = [160, 168]
KA = 176
VA = 184
KD = 188
VD = 192
VBT = 196
VM = 197; VL = 198; VLS = 199
T = 200
VLANE = 208
X = 209
NV_ARCH = 224
QA = 0
FR = 64
NFR = 8
NA = 96

sQ, sK, sV, sBT, sO, sDBG = 20, 24, 28, 32, 36, 40
sCL, sN, sTV, sC, sTHR, sW, sSOK, sSOV, sM0K, sM0V, sTK, sT0, sT1, sT2, sRET, sQOFF, sNEXIT = range(44, 61)
sST = 64

KBASE = 0
VBASE = 65536
SLOT = 16384

def srd(base, ptr, nbytes):
    return [salu('s_mov_b32', f"s{base}", f"s{ptr}"),
            salu('s_and_b32', f"s{base+1}", f"s{ptr+1}", "0xffff"),
            salu('s_mov_b32', f"s{base+2}", hex(nbytes)),
            salu('s_mov_b32', f"s{base+3}", "0x20000")]

def frag(m):
    return FR + 4 * (m % NFR)

def reads_for(m, vslot, kslot):
    f = frag(m)
    if m < 16:
        kk, db = m // 8, m % 8
        out = []
        for t in range(2):
            off = vslot * SLOT + (16 * kk + 8 * t) * 512 + (db // 4) * 256
            out.append(ds_read('ds_read_b64_tr_b16', R('a', f + 2 * t, 2), f"v{VA + db % 4}", off))
        return out
    else:
        ks = m - 16
        off = kslot * SLOT + (ks // 8) * 256
        return [ds_read('ds_read_b128', R('a', f, 4), f"v{KA + ks % 8}", off)]

def nreads(m):
    return 2 if (m % 32) < 16 else 1

def mfma_for(m, par):
    f = R('a', frag(m), 4)
    if m < 16:
        kk, db = m // 8, m % 8
        o = R('v', O0 + 16 * db, 16)
        return mfma(o, f, R('v', P[1 - par] + 4 * kk, 4), o)
    ks = m - 16
    s = R('v', S[1 - par], 16)
    return mfma(s, f, R('a', QA + 4 * ks, 4), s if ks else "0")

def softmax_ops(par):
    ops = []
    sb, pb = S[par], P[par]
    t = lambda e: f"v{T + e % 4}"
    for step in range(16 + 3):
        e = step
        if e < 16:
            ops.append(valu('v_fma_f32', t(e), f"v{sb+e}", f"s{sC}", f"-v{VM}"))
        e = step - 1
        if 0 <= e < 16:
            ops.append(valu('v_exp_f32', t(e), t(e)))
        e = step - 2
        if 0 <= e < 16:
            if e == 1:
                ops.append(valu('v_add_f32', f"v{VLS}", t(0), t(1)))
            elif e > 1:
                ops.append(valu('v_add_f32', f"v{VLS}", f"v{VLS}", t(e)))
            if e % 2 == 1:
                ops.append(valu('v_cvt_pk_bf16_f32', f"v{pb + e//2}", t(e - 1), t(e)))
    return ops

def dma_ops(u):
    groups = []
    vs = (u + 2) % 4
    ks = u
    g = []
    pre_v = [valu('v_readlane_b32', f"s{sSOV}", f"v{VBT}", f"s{sTV}"),
             salu('s_add_u32', f"s{sTK}", f"s{sTV}", 2),
             valu('v_readlane_b32', f"s{sSOK}", f"v{VBT}", f"s{sTK}")]
    items = []
    items.append([salu('s_add_u32', 'm0', f"s{sM0K}", VBASE + vs * SLOT), None])
    return pre_v, vs, ks

def iteration(cfg, u, prologue=False):
    par = u % 2
    vslot = (u - 1) % 4
    kslot = (u + 1) % 4
    vslot_next = u % 4
    D = cfg.DIST
    gaps = [[] for _ in range(32)]
    cost = [0] * 32
    for g in range(32):
        m = g + D
        if m < 32:
            rs = reads_for(m, vslot, kslot)
            tag = 'vread_cur' if m < 16 else 'kread'
        else:
            rs = reads_for(m - 32, vslot_next, None)
            tag = 'vread_next'
        for r in rs:
            r.meta = tag
            gaps[g].append(r); cost[g] += 1
    waits = {}
    W = cfg.WAIT_EVERY
    for m in range(0, 32, W):
        n_out = sum(nreads(x) for x in range(m + W, m + D))
        waits[m] = waitcnt(lgkm=n_out)
        cost[(m - 1) % 32] += 1
    bg = cfg.BAR_GAP
    pre = [valu('v_readlane_b32', f"s{sSOV}", f"v{VBT}", f"s{sTV}"),
           salu('s_add_u32', f"s{sTK}", f"s{sTV}", 2),
           valu('v_readlane_b32', f"s{sSOK}", f"v{VBT}", f"s{sTK}")]
    for k, x in enumerate(pre):
        gg = max(0, bg - 3 + k)
        gaps[gg].append(x); cost[gg] += 1
    gaps[bg].append(waitcnt(vm=12)); gaps[bg].append(raw('s_barrier', 'barrier')); cost[bg] += 2
    vs = (u + 2) % 4; ks = u
    g = cfg.DMA_START
    for which in range(8):
        if which == 0:
            gaps[g].append(salu('s_add_u32', 'm0', f"s{sM0K}", VBASE + vs * SLOT)); cost[g] += 1
            gaps[g].append(nop(1) if False else raw('s_nop 0', 'nop')); cost[g] += 1
        if which == 4:
            gaps[g].append(salu('s_add_u32', 'm0', f"s{sM0K}", KBASE + ks * SLOT)); cost[g] += 1
            gaps[g].append(raw('s_nop 0', 'nop')); cost[g] += 1
        j = which % 4
        if which < 4:
            gaps[g].append(buf_load_lds(f"v{VD + j}", R('s', sV, 4), f"s{sSOV}", j * 1024))
        else:
            gaps[g].append(buf_load_lds(f"v{KD + j}", R('s', sK, 4), f"s{sSOK}", j * 1024))
        cost[g] += 2
        g += cfg.DMA_STEP
    assert g - cfg.DMA_STEP < 32
    gaps[15].append(salu('s_cmp_eq_u32', f"s{sTV}", f"s{sNEXIT}"))
    gaps[15].append(raw('s_cbranch_scc1 L_exit', 'branch', rd=['scc'])); cost[15] += 2
    gaps[31].append(salu('s_add_u32', f"s{sTV}", f"s{sTV}", 1)); cost[31] += 1
    gaps[30].append(valu('v_cmp_nge_f32', 'vcc', f"s{sTHR}", f"v{VLS}")); cost[30] += 1
    gaps[31].append(raw(f's_cbranch_vccnz L_rare{u}', 'branch', rd=['vcc']))
    gaps[31].append(label(f"L_back{u}"))
    gaps[31].append(valu('v_add_f32', f"v{VL}", f"v{VL}", f"v{VLS}")); cost[31] += 2
    ops = softmax_ops(par)
    total = sum(o.cost for o in ops)
    rng = list(range(cfg.VALU_START, cfg.VALU_END + 1))
    lo = 0
    while True:
        cap = sum(max(0, lo - cost[g]) for g in rng)
        if cap >= total: break
        lo += 1
    level = lo
    idx = 0
    caps = [max(0, level - cost[g]) for g in rng]
    scale = total / sum(caps)
    cum_target = 0.0; cum = 0
    for gi, g in enumerate(rng):
        cum_target += caps[gi] * scale
        vl = []
        while idx < len(ops) and (cum + ops[idx].cost / 2.0 <= cum_target or gi == len(rng) - 1):
            vl.append(ops[idx]); cum += ops[idx].cost; cost[g] += ops[idx].cost; idx += 1
        pos = 0
        while pos < len(gaps[g]) and gaps[g][pos].kind in ('ds',): pos += 1
        gaps[g][pos:pos] = vl
    assert idx == len(ops)
    mf = [mfma_for(m, par) for m in range(32)]
    return gaps, mf, waits, cost

def rare_path(u):
    par = u % 2
    sb, pb = S[par], P[par]
    o = [label(f"L_rare{u}")]
    mx, mb, f = f"v{X}", f"v{X+1}", f"v{X+2}"
    o.append(valu('v_max3_f32', mx, f"v{sb}", f"v{sb+1}", f"v{sb+2}"))
    for e in range(3, 15, 2):
        o.append(valu('v_max3_f32', mx, mx, f"v{sb+e}", f"v{sb+e+1}"))
    o.append(valu('v_max_f32', mx, mx, f"v{sb+15}"))
    o.append(valu('v_mov_b32', mb, mx))
    o.append(nop(2))
    o.append(valu('v_permlane32_swap_b32', mx, mb))
    o.append(nop(2))
    o.append(valu('v_max_f32', mx, mx, mb))
    o.append(valu('v_mul_f32', mx, f"s{sC}", mx))
    o.append(valu('v_max_f32', mx, mx, f"v{VM}"))
    o.append(valu('v_sub_f32', f, f"v{VM}", mx))
    o.append(valu('v_exp_f32', f, f))
    o.append(valu('v_mov_b32', f"v{VM}", mx))
    o.append(valu('v_mul_f32', f"v{VL}", f"v{VL}", f))
    for i in range(128):
        o.append(valu('v_mul_f32', f"v{O0+i}", f"v{O0+i}", f))
    o += softmax_ops(par)
    o.append(nop(2))
    o.append(raw(f"s_branch L_back{u}", 'branch'))
    return o

def stamp(cfg, k):
    if not cfg.STAMP: return []
    return [raw(f"s_memtime s[{sST+2*k}:{sST+2*k+1}]", 'smem'), waitcnt(lgkm=0)]

def build(cfg):
    o = []
    e = o.append
    e(salu('s_cmp_ge_u32', 's2', 256)); e(raw('s_cbranch_scc1 L_end', 'branch'))
    e(raw('s_load_dwordx8 s[4:11], s[0:1], 0', 'smem', wr=['s[4:11]']))
    e(raw('s_load_dwordx8 s[12:19], s[0:1], 32', 'smem', wr=['s[12:19]']))
    if cfg.STAMP:
        e(raw(f"s_memtime s[{sST}:{sST+1}]", 'smem'))
        e(raw(f"s_memrealtime s[{sST+16}:{sST+17}]", 'smem'))
    lane = f"v{VLANE}"
    x = lambda i: f"v{X+i}"
    e(valu('v_and_b32', lane, 63, 'v0'))
    e(valu('v_lshrrev_b32', x(0), 6, 'v0'))
    e(nop(1))
    e(valu('v_readfirstlane_b32', f"s{sW}", x(0)))
    e(salu('s_and_b32', f"s{sT0}", 's2', 7))
    e(salu('s_lshr_b32', f"s{sT1}", 's2', 3))
    e(salu('s_lshl_b32', f"s{sT2}", f"s{sT0}", 12))
    e(salu('s_lshl_b32', f"s{sT1}", f"s{sT1}", 7))
    e(salu('s_add_u32', f"s{sT2}", f"s{sT2}", f"s{sT1}"))
    e(salu('s_lshl_b32', f"s{sT1}", f"s{sW}", 5))
    e(salu('s_add_u32', f"s{sT2}", f"s{sT2}", f"s{sT1}"))
    e(salu('s_lshl_b32', f"s{sQOFF}", f"s{sT2}", 9))
    e(salu('s_lshl_b32', f"s{sM0K}", f"s{sW}", 12))
    l32, h = x(1), x(2)
    e(valu('v_and_b32', l32, 31, lane))
    e(valu('v_lshrrev_b32', h, 5, lane))
    e(valu('v_lshlrev_b32', x(3), 9, l32))
    e(valu('v_lshl_add_u32', x(3), h, 4, x(3)))
    e(salu('s_lshr_b32', f"s{sT1}", f"s{sW}", 1))
    e(salu('s_lshl_b32', f"s{sT1}", f"s{sT1}", 2))
    e(valu('v_lshlrev_b32', x(4), 3, lane))
    e(valu('v_add_u32', x(4), f"s{sT1}", x(4)))
    e(waitcnt(lgkm=0))
    o += srd(sBT, 10, 512)
    e(buf_load('buffer_load_dword', f"v{VBT}", x(4), R('s', sBT, 4), 0))
    e(raw(f"s_load_dword s{sCL}, s[12:13], 0", 'smem', wr=[f"s{sCL}"]))
    o += srd(sQ, 4, 16 * 2048 * 512)
    for ks in range(16):
        e(buf_load('buffer_load_dwordx4', R('a', QA + 4 * ks, 4), x(3), R('s', sQ, 4), f"s{sQOFF}", ks * 32))
    o += srd(sK, 6, 132 * 65536)
    o += srd(sV, 8, 132 * 65536)
    o += srd(sO, 14, 16 * 2048 * 512)
    e(valu('v_and_b32', x(5), 15, l32))
    e(valu('v_xor_b32', x(5), x(5), h))
    e(valu('v_lshlrev_b32', x(6), 9, l32))
    for k in range(8):
        e(valu('v_xor_b32', x(7), 2 * k, x(5)))
        e(valu('v_lshl_add_u32', f"v{KA+k}", x(7), 4, x(6)))
    r_ = x(5)
    e(valu('v_bfe_u32', r_, lane, 2, 2))
    e(valu('v_lshl_add_u32', x(6), h, 2, r_))
    e(valu('v_lshlrev_b32', x(6), 9, x(6)))
    e(valu('v_bfe_u32', x(7), lane, 4, 1))
    e(valu('v_lshl_add_u32', x(6), x(7), 5, x(6)))
    e(valu('v_and_b32', x(7), 3, lane))
    e(valu('v_lshl_add_u32', x(6), x(7), 3, x(6)))
    e(valu('v_add_u32', x(6), hex(VBASE), x(6)))
    for d in range(4):
        e(valu('v_xor_b32', x(7), d, r_))
        e(valu('v_lshl_add_u32', f"v{VA+d}", x(7), 6, x(6)))
    e(salu('s_and_b32', f"s{sT1}", f"s{sW}", 1))
    e(salu('s_lshl_b32', f"s{sT1}", f"s{sT1}", 3))
    e(salu('s_lshl_b32', f"s{sT0}", f"s{sT0}", 9))
    for j in range(4):
        e(valu('v_add_u32', x(5), f"s{sT1}", h))
        e(valu('v_add_u32', x(5), 2 * j, x(5)))
        e(valu('v_lshlrev_b32', x(6), 12, x(5)))
        e(valu('v_add_u32', x(6), f"s{sT0}", x(6)))
        if j: e(valu('v_subrev_u32', x(6), j * 1024, x(6)))
        e(valu('v_xor_b32', x(7), x(5), l32))
        e(valu('v_lshl_add_u32', f"v{KD+j}", x(7), 4, x(6)))
        e(valu('v_and_b32', x(7), 3, x(5)))
        e(valu('v_lshlrev_b32', x(7), 2, x(7)))
        e(valu('v_xor_b32', x(7), x(7), l32))
        e(valu('v_lshl_add_u32', f"v{VD+j}", x(7), 4, x(6)))
    for i in range(128):
        e(valu('v_mov_b32', f"v{O0+i}", 0))
    e(valu('v_mov_b32', f"v{VL}", 0))
    e(salu('s_mov_b32', f"s{sTHR}", hex(f2u(65536.0))))
    e(waitcnt(lgkm=0))
    e(salu('s_mov_b32', f"s{sC}", hex(f2u(1.4426950408889634 / 16.0))))
    e(salu('s_cmp_lt_i32', f"s{sCL}", 1))
    e(salu('s_cselect_b32', f"s{sC}", 0, f"s{sC}"))
    e(salu('s_cselect_b32', f"s{sCL}", 2048, f"s{sCL}"))
    e(salu('s_min_u32', f"s{sCL}", f"s{sCL}", 2048))
    e(salu('s_add_u32', f"s{sN}", f"s{sCL}", 31))
    e(salu('s_lshr_b32', f"s{sN}", f"s{sN}", 5))
    e(salu('s_sub_u32', f"s{sT0}", f"s{sN}", 1))
    e(salu('s_add_u32', f"s{sNEXIT}", f"s{sN}", 1))
    e(waitcnt(vm=16))
    e(valu('v_lshlrev_b32', f"v{VBT}", 16, f"v{VBT}"))
    e(nop(1))
    e(valu('v_readlane_b32', f"s{sSOK}", f"v{VBT}", f"s{sT0}"))
    e(valu('v_mov_b32', x(5), '0x40000000'))
    e(valu('v_cmp_gt_u32', 'vcc', f"s{sT0}", lane))
    e(nop(2))
    e(valu('v_cndmask_b32', f"v{VBT}", x(5), f"v{VBT}", 'vcc'))
    e(nop(1))
    e(valu('v_readlane_b32', f"s{sT1}", f"v{VBT}", 0))
    e(valu('v_readlane_b32', f"s{sT2}", f"v{VBT}", 1))
    e(valu('v_readlane_b32', f"s{sTK}", f"v{VBT}", 2))
    def dma4(isK, slot, soff):
        r = [salu('s_add_u32', 'm0', f"s{sM0K}", (KBASE if isK else VBASE) + slot * SLOT), nop(1)]
        for j in range(4):
            r.append(buf_load_lds(f"v{(KD if isK else VD) + j}", R('s', sK if isK else sV, 4), f"s{soff}", j * 1024))
        return r
    e(nop(2))
    o += dma4(True, 0, sSOK)
    o += dma4(True, 1, sT1)
    o += dma4(False, 0, sSOK)
    o += dma4(True, 2, sT2)
    o += dma4(False, 1, sT1)
    o += dma4(True, 3, sTK)
    e(salu('s_mov_b32', f"s{sTV}", 1))
    e(salu('s_lshl_b32', f"s{sT0}", f"s{sT0}", 5))
    e(salu('s_sub_u32', f"s{sT0}", f"s{sCL}", f"s{sT0}"))
    e(valu('v_lshlrev_b32', x(5), 2, h))
    e(valu('v_sub_u32', x(5), f"s{sT0}", x(5)))
    e(valu('v_mov_b32', x(6), hex(f2u(-1e30))))
    o += stamp(cfg, 1)
    e(waitcnt(vm=20))
    e(raw('s_barrier', 'barrier'))
    o += stamp(cfg, 2)
    for ks in range(16):
        off = 0 * SLOT + (ks // 8) * 256
        if ks < 8:
            e(ds_read('ds_read_b128', R('a', FR + 4 * ks, 4), f"v{KA + ks % 8}", off))
    for ks in range(16):
        e(waitcnt(lgkm=min(7, 15 - ks)))
        s = R('v', S[0], 16)
        e(mfma(s, R('a', FR + 4 * (ks % 8), 4), R('a', QA + 4 * ks, 4), s if ks else "0"))
        if ks + 8 < 16:
            e(ds_read('ds_read_b128', R('a', FR + 4 * (ks % 8), 4), f"v{KA + ks % 8}", 256))
    e(nop(12))
    for i in range(16):
        kl = 8 * (i // 4) + i % 4
        e(valu('v_cmp_lt_i32', 'vcc', kl, x(5)))
        e(nop(2))
        e(valu('v_cndmask_b32', f"v{S[0]+i}", x(6), f"v{S[0]+i}", 'vcc'))
    sb = S[0]
    mx, mb = x(7), x(8)
    e(valu('v_max3_f32', mx, f"v{sb}", f"v{sb+1}", f"v{sb+2}"))
    for k in range(3, 15, 2):
        e(valu('v_max3_f32', mx, mx, f"v{sb+k}", f"v{sb+k+1}"))
    e(valu('v_max_f32', mx, mx, f"v{sb+15}"))
    e(valu('v_mov_b32', mb, mx))
    e(nop(2))
    e(valu('v_permlane32_swap_b32', mx, mb))
    e(nop(2))
    e(valu('v_max_f32', mx, mx, mb))
    e(valu('v_mul_f32', f"v{VM}", f"s{sC}", mx))
    its = [iteration(cfg, u) for u in range(4)]
    gaps0 = its[0][0]
    for g in range(16):
        for ins in gaps0[g]:
            if ins.kind == 'ds' and ins.meta == 'vread_cur': continue
            if ins.kind == 'branch' or ins.text.startswith('s_cmp_eq'): continue
            if ins.kind == 'dma' or 'm0' in ins.wr: e(nop(5))
            e(ins)
            if ins.kind == 'trans': e(nop(1))
    o += stamp(cfg, 3)
    e(raw('s_branch L_entry', 'branch'))
    pro = list(o)
    loop = []
    loop.append(raw('.p2align 6', 'misc'))
    loop.append(label('L_loop'))
    for u in range(4):
        gaps, mf, waits, cost = its[u]
        if u == 0: print("gap costs", cost, sum(cost), file=sys.stderr)
        for m in range(32):
            if u == 0 and m == 16: loop.append(label('L_entry'))
            if m in waits: loop.append(waits[m])
            loop.append(mf[m])
            loop += gaps[m]
    loop.append(raw('s_branch L_loop', 'branch'))
    ep = []
    e = ep.append
    e(label('L_exit'))
    ep += stamp(cfg, 4)
    e(valu('v_mov_b32', x(0), f"v{VL}"))
    e(nop(2))
    e(valu('v_permlane32_swap_b32', x(0), f"v{VL}"))
    e(nop(2))
    e(valu('v_add_f32', x(0), x(0), f"v{VL}"))
    e(valu('v_rcp_f32', x(0), x(0)))
    e(valu('v_and_b32', x(1), 31, lane))
    e(valu('v_lshrrev_b32', x(2), 5, lane))
    e(valu('v_lshlrev_b32', x(3), 9, x(1)))
    e(valu('v_lshl_add_u32', x(3), x(2), 4, x(3)))
    e(nop(8))
    tb = 128
    k = 0
    for db in range(8):
        for gp in range(2):
            pk = tb + 4 * (k % 8); k += 1
            base = O0 + 16 * db + 8 * gp
            for i in range(8):
                e(valu('v_mul_f32', f"v{base+i}", f"v{base+i}", x(0)))
            for i in range(4):
                e(valu('v_cvt_pk_bf16_f32', f"v{pk+i}", f"v{base+2*i}", f"v{base+2*i+1}"))
            e(nop(2))
            e(valu('v_permlane32_swap_b32', f"v{pk}", f"v{pk+2}"))
            e(valu('v_permlane32_swap_b32', f"v{pk+1}", f"v{pk+3}"))
            e(buf_store('buffer_store_dwordx4', R('v', pk, 4), x(3), R('s', sO, 4), f"s{sQOFF}", db * 64 + gp * 32, cfg.STORE_FLAGS))
    if cfg.STAMP:
        e(waitcnt(vm=0))
        ep += stamp(cfg, 5)
        e(raw(f"s_memrealtime s[{sST+18}:{sST+19}]", 'smem')); e(waitcnt(lgkm=0))
        e(salu('s_cmp_lg_u32', 's2', cfg.STAMP_WG)); e(raw('s_cbranch_scc1 L_end', 'branch'))
        e(salu('s_cmp_lg_u32', f"s{sW}", 0)); e(raw('s_cbranch_scc1 L_end', 'branch'))
        ep += srd(sDBG, 16, 256)
        e(valu('v_mov_b32', x(5), 0))
        for k in range(1, 6):
            e(salu('s_sub_u32', f"s{sT0}", f"s{sST+2*k}", f"s{sST}"))
            e(valu('v_mov_b32', x(6), f"s{sT0}"))
            e(buf_store('buffer_store_dword', x(6), x(5), R('s', sDBG, 4), 0, 4 * k))
            e(nop(2))
        e(salu('s_sub_u32', f"s{sT0}", f"s{sST+18}", f"s{sST+16}"))
        e(valu('v_mov_b32', x(6), f"s{sT0}"))
        e(buf_store('buffer_store_dword', x(6), x(5), R('s', sDBG, 4), 0, 4 * 6))
    e(label('L_end'))
    e(raw('s_endpgm', 'end'))
    rare = []
    for u in range(4): rare += rare_path(u)
    errs = []
    ent = next(i for i, z in enumerate(loop) if z.label == 'L_entry')
    errs += check_hazards(pro + loop[ent:] + loop + loop, "main")
    for u in range(4):
        cnt = -1
        for i, z in enumerate(loop):
            if z.text == 's_cbranch_scc1 L_exit':
                cnt += 1
                if cnt == u:
                    errs += check_hazards(loop[max(0, i - 60):i + 1] + ep, f"exit{u}")
    for u in range(4):
        i = next(i for i, z in enumerate(loop) if z.text == f's_cbranch_vccnz L_rare{u}')
        errs += check_hazards(loop[max(0, i - 60):i + 1] + rare_path(u) + (loop + loop)[i + 1:i + 60], f"rare{u}")
    for z in errs: print(z, file=sys.stderr)
    body = pro + loop + ep + rare
    return body, errs

HEADER = """; Paged attention (prompt) : B=1 Hq=16 Hkv=8 Sq=2048 Skv=2048 D=256 bs=16
; @launch grid=(256,1,1) block=(256,1,1) lds={lds}
.amdgcn_target "amdgcn-amd-amdhsa--gfx950"
.text
.globl {k}
.p2align 8
.type {k},@function
{k}:
"""
FOOTER = """.section .rodata,"a"
.p2align 6
.amdhsa_kernel {k}
  .amdhsa_next_free_vgpr {nfv}
  .amdhsa_next_free_sgpr 96
  .amdhsa_accum_offset {acc}
  .amdhsa_group_segment_fixed_size 0
  .amdhsa_kernarg_size 64
  .amdhsa_user_sgpr_count 2
  .amdhsa_user_sgpr_kernarg_segment_ptr 1
  .amdhsa_system_sgpr_workgroup_id_x 1
.end_amdhsa_kernel
"""

if __name__ == "__main__":
    ap = argparse.ArgumentParser()
    ap.add_argument('-o', default='/dev/stdout')
    ap.add_argument('--set', action='append', default=[])
    a = ap.parse_args()
    cfg = Cfg()
    cfg.STAMP_WG = 0
    for s in a.set:
        k, v = s.split('=', 1)
        try: v = int(v)
        except ValueError: pass
        setattr(cfg, k, v)
    body, errs = build(cfg)
    txt = HEADER.format(k=KNAME, lds=131072) + render(body) + FOOTER.format(k=KNAME, nfv=NV_ARCH + NA, acc=NV_ARCH)
    open(a.o, 'w').write(txt)
    if errs: sys.exit(1)
```
